```python
import torch

def _softmax(x, axis=-1):
    return torch.softmax(x, dim=axis)
def _gelu(x):
    return torch.nn.functional.gelu(x, approximate="tanh")
def _silu(x):
    return torch.nn.functional.silu(x)
def _sigmoid(x):
    return torch.sigmoid(x)
def _layernorm(x, axis=-1, eps=1e-5):
    m = x.mean(dim=axis, keepdim=True)
    v = x.var(dim=axis, keepdim=True, unbiased=False)
    return (x - m) / torch.sqrt(v + eps)
def _scatter_add(tgt, idx, src, axis=0):
    return tgt.clone().index_add_(axis, idx, src)
def _segment_sum(src, seg, n):
    out = torch.zeros((n,) + src.shape[1:], dtype=src.dtype)
    return out.index_add_(0, seg, src)
def _pad(x, pw):
    flat = tuple(v for pair in reversed(pw) for v in pair)
    return torch.nn.functional.pad(x, flat)

kernel_name = 'interleave_layers__sliding_block_cached__swiglu_ffn__decode'

def setup_inputs():

    _w = (lambda a: (lambda t: t.to(torch.bfloat16) if t.is_floating_point() else t)(torch.as_tensor(a)))
    def _A_setup():
        B, Sq, D = 1, 1, 448
        Hq, Hkv, Sk, Dh = 16, 8, 65536, 256
        assert Hq % Hkv == 0, (Hq, Hkv)
        return {
            "x": _w((lambda *s: torch.randn(*s, dtype=torch.bfloat16) * 0.05)(B, Sq, D)),
            "k_cache": _w((lambda *s: torch.randn(*s, dtype=torch.bfloat16) * 1.6)(B, Hkv, Sk, Dh)),
            "v_cache": _w((lambda *s: torch.randn(*s, dtype=torch.bfloat16) * 1.6)(B, Hkv, Sk, Dh)),
            "wq": _w((lambda *s: torch.randn(*s, dtype=torch.bfloat16) * 1.6)(D, Hq * Dh) * (D ** -0.5)),
            "wo": _w((lambda *s: torch.randn(*s, dtype=torch.bfloat16) * 1.6)(Hq * Dh, D) * ((Hq * Dh) ** -0.5)),
        }
    _A_in = _A_setup()

    def _B_setup():
        B, S, D, F = 1, 1, 448, 1792
        return {
            "x": _w((lambda *s: torch.randn(*s, dtype=torch.bfloat16) * 0.05)(B, S, D)),
            "w_gate": _w((lambda *s: torch.randn(*s, dtype=torch.bfloat16) * 0.05)(D, F)),
            "w_up": _w((lambda *s: torch.randn(*s, dtype=torch.bfloat16) * 0.05)(D, F)),
            "w_down": _w((lambda *s: torch.randn(*s, dtype=torch.bfloat16) * 0.05)(F, D)),
        }
    _B_in = _B_setup()

    return {
        "A_x": _A_in["x"],
        "A_k_cache": _A_in["k_cache"],
        "A_v_cache": _A_in["v_cache"],
        "A_wq": _A_in["wq"],
        "A_wo": _A_in["wo"],
        "B_x": _B_in["x"],
        "B_w_gate": _B_in["w_gate"],
        "B_w_up": _B_in["w_up"],
        "B_w_down": _B_in["w_down"],
    }

def reference(A_x, A_k_cache, A_v_cache, A_wq, A_wo, B_x, B_w_gate, B_w_up, B_w_down):
    def _A_ref(x, k_cache, v_cache, wq, wo):
        B, Sq, D = x.shape
        Hq, Dh = 16, 256
        Hkv, Sk = k_cache.shape[1], k_cache.shape[2]
        W = min(4096, max(256, Sk // 4))
        rep = Hq // Hkv
        q = (lambda x, *d: x.permute(*d))((x @ wq).reshape(B, Sq, Hq, Dh), 0, 2, 1, 3)
        k = (lambda x, n, axis: torch.repeat_interleave(x, n, dim=axis))(k_cache[:, :, Sk - W:, :], rep, axis=1)
        v = (lambda x, n, axis: torch.repeat_interleave(x, n, dim=axis))(v_cache[:, :, Sk - W:, :], rep, axis=1)
        scores = torch.einsum("bhqd,bhkd->bhqk", q, k) * (Dh ** -0.5)
        p = _softmax(scores, axis=-1)
        o = torch.einsum("bhqk,bhkd->bhqd", p, v)
        return (lambda x, *d: x.permute(*d))(o, 0, 2, 1, 3).reshape(B, Sq, Hq * Dh) @ wo

    def _B_ref(x, w_gate, w_up, w_down):
        g = _silu(x @ w_gate)
        u = x @ w_up
        return (g * u) @ w_down

    x = A_x
    x = x + _A_ref(_layernorm(x, axis=-1), A_k_cache, A_v_cache, A_wq, A_wo)
    x = x + _B_ref(_layernorm(x, axis=-1), B_w_gate, B_w_up, B_w_down)
    x = x + _A_ref(_layernorm(x, axis=-1), A_k_cache, A_v_cache, A_wq, A_wo)
    x = x + _B_ref(_layernorm(x, axis=-1), B_w_gate, B_w_up, B_w_down)
    return x
```

```python
import re

_REG = re.compile(r"\b([vas])(\d+)\b|\b([vas])\[(\d+):(\d+)\]")
TRANS = ("v_exp_f32", "v_log_f32", "v_rcp_f32", "v_rsq_f32", "v_sqrt_f32", "v_sin_f32", "v_cos_f32")


def regs_of(op):
    out = set()
    op = op.strip()
    if op in ("vcc",):
        return {("s", 106), ("s", 107)}
    if op in ("vcc_lo",):
        return {("s", 106)}
    if op in ("vcc_hi",):
        return {("s", 107)}
    if op in ("exec",):
        return {("s", 126), ("s", 127)}
    if op == "m0":
        return {("s", 124)}
    for m in _REG.finditer(op):
        if m.group(1):
            out.add((m.group(1), int(m.group(2))))
        else:
            for i in range(int(m.group(4)), int(m.group(5)) + 1):
                out.add((m.group(3), i))
    return out


def split_ops(s):
    ops, depth, cur = [], 0, ""
    for ch in s:
        if ch == "[":
            depth += 1
        if ch == "]":
            depth -= 1
        if ch == "," and depth == 0:
            ops.append(cur.strip())
            cur = ""
        else:
            cur += ch
    if cur.strip():
        ops.append(cur.strip())
    return ops


class Asm:
    def __init__(self):
        self.lines = []
        self.t = 0
        self.reset_state(unknown=False)
        self.nops_added = 0

    def reset_state(self, unknown):
        self.valu_w = {}
        self.trans_w = {}
        self.dot_w = {}
        self.mfma_w = {}
        self.mfma_c = {}
        self.valu_sw = {}
        self.store_d = {}
        self.m0_w = -100
        self.unknown_t = self.t if unknown else -100

    def raw(self, s):
        self.lines.append(s)

    def comment(self, s):
        self.lines.append("    ; " + s)

    def _flush_mfma(self):
        need = 0
        for r, (t, _) in self.mfma_w.items():
            need = max(need, 8 - (self.t - t - 1))
        for r, (t, _) in self.dot_w.items():
            need = max(need, 3 - (self.t - t - 1))
        for r, t in self.valu_sw.items():
            need = max(need, 5 - (self.t - t - 1))
        for r, t in self.store_d.items():
            need = max(need, 2 - (self.t - t - 1))
        for r, t in self.mfma_c.items():
            need = max(need, 3 - (self.t - t - 1))
        self._nop(need)

    def label(self, name):
        self._flush_mfma()
        self.lines.append(name + ":")
        self.reset_state(unknown=True)

    def _nop(self, n):
        while n > 0:
            k = min(n, 16)
            self.lines.append("    s_nop %d" % (k - 1))
            self.t += k
            self.nops_added += k
            n -= k

    def nop(self, n):
        self._nop(n)

    def __call__(self, line):
        for l in line.strip().split("\n"):
            l = l.split(";")[0].strip()
            if l:
                self.emit(l)

    def emit(self, line):
        parts = line.split(None, 1)
        opc = parts[0]
        rest = parts[1] if len(parts) > 1 else ""
        ops = split_ops(rest)
        mods = ""
        if ops:
            last = ops[-1].split(None, 1)
            if len(last) > 1 and not ops[-1].startswith("hwreg"):
                ops[-1] = last[0]
                mods = last[1]
        is_dpp = "_dpp" in opc or any(k in mods for k in ("quad_perm", "row_shl", "row_shr", "row_ror", "row_newbcast", "row_mirror", "row_half_mirror", "row_bcast"))
        if opc.startswith("s_branch") or opc.startswith("s_cbranch") or opc == "s_endpgm":
            self._flush_mfma()
            self.lines.append("    " + line)
            self.t += 1
            return
        W, R = set(), set()
        kind = None
        if opc.startswith("v_mfma"):
            kind = "mfma"
            D = regs_of(ops[0])
            A = regs_of(ops[1])
            B = regs_of(ops[2])
            C = regs_of(ops[3])
            W = D
            R = A | B | C
        elif opc.startswith("v_"):
            kind = "valu"
            if opc.startswith("v_cmp"):
                W = regs_of(ops[0])
                for o in ops[1:]:
                    R |= regs_of(o)
            elif opc.startswith("v_permlane") :
                W = regs_of(ops[0]) | regs_of(ops[1])
                R = set(W)
            elif opc.startswith("v_add_co") or opc.startswith("v_addc_co") or opc.startswith("v_sub_co"):
                W = regs_of(ops[0]) | regs_of(ops[1])
                for o in ops[2:]:
                    R |= regs_of(o)
            elif opc == "v_nop":
                pass
            else:
                W = regs_of(ops[0])
                for o in ops[1:]:
                    R |= regs_of(o)
                if opc.startswith("v_fmac") or opc.startswith("v_dot2c") or is_dpp:
                    R |= W
                if opc.startswith("v_cndmask") and len(ops) == 3:
                    R |= regs_of("vcc")
        elif opc.startswith("global_") or opc.startswith("buffer_") or opc.startswith("flat_"):
            kind = "vmem"
            if "_load_lds" in opc or (opc.startswith("buffer_load") and "lds" in mods.split()):
                for o in ops:
                    R |= regs_of(o)
                R |= regs_of("m0")
                kind = "vmem_lds"
            elif "_load" in opc:
                W = regs_of(ops[0])
                for o in ops[1:]:
                    R |= regs_of(o)
            elif "atomic" in opc and "sc0" in mods.split():
                W = regs_of(ops[0])
                for o in ops[1:]:
                    R |= regs_of(o)
            else:
                for o in ops:
                    R |= regs_of(o)
        elif opc.startswith("ds_"):
            kind = "ds"
            if opc.startswith("ds_read") or opc.startswith("ds_bpermute") or opc.startswith("ds_swizzle"):
                W = regs_of(ops[0])
                for o in ops[1:]:
                    R |= regs_of(o)
            else:
                for o in ops:
                    R |= regs_of(o)
        elif opc.startswith("s_"):
            kind = "salu"
            if opc in ("s_waitcnt", "s_barrier", "s_sleep", "s_setprio", "s_nop") or opc.startswith("s_cmp"):
                for o in ops:
                    R |= regs_of(o)
            else:
                if ops:
                    W = regs_of(ops[0])
                for o in ops[1:]:
                    R |= regs_of(o)
                if "saveexec" in opc:
                    W |= regs_of("exec")
        else:
            raise ValueError("unknown opcode " + line)

        need = 0

        def req(tprod, ws):
            nonlocal need
            have = self.t - tprod - 1
            if ws - have > need:
                need = ws - have

        vR = {r for r in R if r[0] in "va"}
        vW = {r for r in W if r[0] in "va"}
        sR = {r for r in R if r[0] == "s"}
        is_perm = opc.startswith("v_permlane")
        is_rl = opc.startswith("v_readlane") or opc.startswith("v_readfirstlane")
        is_trans = opc.replace("_e32", "").replace("_e64", "") in TRANS
        is_dot = opc.startswith("v_dot2")
        if kind in ("valu", "mfma"):
            if is_dpp or is_perm or kind == "mfma":
                req(self.unknown_t - 1, 2)
            elif is_rl or True:
                pass
            if is_rl:
                req(self.unknown_t - 1, 1)
        for r in vR:
            if r in self.valu_w:
                tw = self.valu_w[r]
                if kind == "valu" and (is_perm or (is_dpp and r in regs_of(ops[1]))):
                    req(tw, 2)
                if kind == "mfma":
                    req(tw, 2)
                if is_rl:
                    req(tw, 1)
            if r in self.trans_w and kind == "valu" and not is_trans:
                req(self.trans_w[r], 1)
            if r in self.trans_w and kind in ("vmem", "ds", "vmem_lds"):
                req(self.trans_w[r], 1)
            if r in self.dot_w:
                tw, o2 = self.dot_w[r]
                same_c = is_dot and o2 == opc and (r in regs_of(ops[-1 if not opc.startswith("v_dot2c") else 0])) and not (
                    r in regs_of(ops[1]) or r in regs_of(ops[2]))
                if not same_c:
                    req(tw, 3)
            if r in self.mfma_w:
                tw, dt = self.mfma_w[r]
                if kind == "mfma":
                    if r in A or r in B:
                        req(tw, 8)
                    elif r in C:
                        if C == dt:
                            pass
                        else:
                            req(tw, 6)
                else:
                    req(tw, 8)
        for r in vW:
            if r in self.mfma_w and kind != "mfma":
                req(self.mfma_w[r][0], 8)
            if r in self.mfma_w and kind == "mfma" and not (r in C and C == self.mfma_w[r][1]):
                req(self.mfma_w[r][0], 8)
            if r in self.mfma_c and kind == "valu":
                req(self.mfma_c[r], 3)
            if r in self.mfma_c and kind in ("vmem", "ds"):
                req(self.mfma_c[r], 3)
            if r in self.store_d:
                req(self.store_d[r], 2)
            if r in self.dot_w and not is_dot:
                req(self.dot_w[r][0], 3)
        for r in sR:
            if r in self.valu_sw:
                tw = self.valu_sw[r]
                if kind == "valu":
                    req(tw, 4 if is_rl else 2)
                elif kind in ("vmem", "vmem_lds"):
                    req(tw, 5)
                elif kind == "salu":
                    req(tw, 1)
                elif kind == "mfma":
                    req(tw, 2)
        if kind == "vmem_lds":
            req(self.m0_w, 1)
        self._nop(need)
        self.lines.append("    " + line)
        now = self.t
        if opc == "s_nop":
            self.t += int(ops[0]) + 1
        else:
            self.t += 1
        for r in W:
            if r[0] in "va":
                for d in (self.valu_w, self.trans_w, self.dot_w, self.mfma_w):
                    d.pop(r, None)
                if kind == "valu":
                    self.valu_w[r] = now
                    if is_trans:
                        self.trans_w[r] = now
                    if is_dot:
                        self.dot_w[r] = (now, opc)
                elif kind == "mfma":
                    self.mfma_w[r] = (now, frozenset(D))
            else:
                self.valu_sw.pop(r, None)
                if kind == "valu":
                    self.valu_sw[r] = now
                if r == ("s", 124) and kind == "salu":
                    self.m0_w = now
        if kind == "mfma":
            for r in C:
                if r[0] in "va":
                    self.mfma_c[r] = now
        if kind == "vmem" and "store" in opc and ("x4" in opc or "x3" in opc):
            for r in regs_of(ops[1]):
                self.store_d[r] = now

    def text(self):
        return "\n".join(self.lines) + "\n"
```

```python
import sys, os
sys.path.insert(0, os.path.dirname(os.path.abspath(__file__)))
from asmlib import Asm

NAME = "interleave_layers__sliding_block_cached__swiglu_ffn__decode"
KN = NAME + "_kernel"

OPT = dict(stamps=False, nt=False)
for a in sys.argv[2:]:
    k, v = a.split("=")
    OPT[k] = int(v)

QMB = 0x00000
SMB = 0x04000
HMB = 0x06000
XL = 0x08000
XB = 0x10000
XE = 0x30000
OMB = 0x40000
STAMP = 0x100000

L_V = 0
L_WQ = 65536
L_WG = 79872
L_WO = 94208
L_WD = 110592
L_OW = 124928
L_ST = 133120
L_Q = 133184
L_PURE = 134208
L_RED = 134224 + 48
LDS_BYTES = 135424

KEY0 = 65536 - 4096
LOG2E = 1.4426950408889634
import struct
def f32(x):
    return "0x%08x" % struct.unpack("<I", struct.pack("<f", x))[0]

A = Asm()
slow_paths = []
_lbl = [0]
def L(prefix="L"):
    _lbl[0] += 1
    return "%s_%d" % (prefix, _lbl[0])

sX, sK, sV, sWQ, sWO, sWGt, sWU, sWD, sOUT, sDBG, sWS = ("s[4:5]", "s[6:7]", "s[8:9]", "s[10:11]", "s[12:13]", "s[16:17]",
                                                  "s[18:19]", "s[20:21]", "s[22:23]", "s[24:25]", "s[26:27]")
sG, sR, sW, sXCC, sPURE = "s28", "s29", "s30", "s31", "s32"
sRHO, sGAM = "s33", "s34"
sT0, sT1, sT2, sT3 = "s35", "s36", "s37", "s38"
sKB = "s[40:41]"; sVB = "s[42:43]"; sTB = "s[44:45]"
sCNT = "s46"
sLV = "s47"
sM14 = "s[48:49]"
sA, sB = "s50", "s51"
sCS = "s52"
sSTB = "s[54:55]"
vTID, vLANE, vN, vGQ = "v0", "v1", "v2", "v3"
vQP, vOPUB, vSPUB, vA0, vA1, vSTP, vXBPUB, vRPOLL, vRPUB, vXEG = ("v4", "v5", "v6", "v7", "v8", "v9", "v10", "v11", "v12", "v13")
vLOW, vLCR, vLST, vLTR = "v14", "v15", "v16", "v17"
vXO0, vXO1, vCS, vINV448 = "v18", "v19", "v20", "v21"
vLQ, vLRED = "v22", "v23"
XQ = 24
BF0, BF1 = 28, 32
S0, S1 = 36, 40
PF = 44
ONES = 48
LAC = 52
T = [56, 57, 58, 59, 60, 61, 62, 63]
ACC = 64
aK, aV, aRW, aWO = 0, 64, 128, 184

def v(i, n=1):
    return "v%d" % i if n == 1 else "v[%d:%d]" % (i, i + n - 1)
def a(i, n=4):
    return "a[%d:%d]" % (i, i + n - 1)

NT = " nt" if OPT["nt"] else ""
POLL_MAX = 1 << 16

stamp_idx = [0]
def stamp(name):
    if not OPT["stamps"]:
        return
    i = stamp_idx[0]
    stamp_idx[0] += 1
    A.comment("stamp %d %s" % (i, name))
    A("s_memrealtime s[60:61]")
    A("s_waitcnt lgkmcnt(0)")
    A("v_mov_b32 v130, s60")
    A("s_mov_b64 s[62:63], exec")
    A("s_mov_b64 exec, 1")
    A("global_store_dword v131, v130, %s offset:%d" % (sSTB, i * 4))
    A("s_mov_b64 exec, s[62:63]")

def istore(instr):
    ls, lb = L("Lslow"), L("Lback")
    A("s_cmp_lg_u32 %s, 0" % sPURE)
    A("s_cbranch_scc0 %s" % ls)
    A(instr)
    A.label(lb)
    slow_paths.append((ls, instr + " sc1", lb))

def poll(loads, regs, sleep=0):
    lp, lo = L("Lpoll"), L("Lpok")
    A("s_mov_b32 %s, %d" % (sCNT, POLL_MAX))
    A.label(lp)
    for ld in loads:
        A(ld)
    A("s_sub_u32 %s, %s, 1" % (sCNT, sCNT))
    A("s_cbranch_scc1 L_bail")
    A("s_waitcnt vmcnt(0)")
    rs = list(regs)
    t = T[7]
    first = True
    while rs:
        if first:
            if len(rs) >= 3:
                A("v_max3_u32 v%d, v%d, v%d, v%d" % (t, rs[0], rs[1], rs[2])); rs = rs[3:]
            else:
                A("v_max_u32 v%d, v%d, v%d" % (t, rs[0], rs[1])); rs = rs[2:]
            first = False
        elif len(rs) >= 2:
            A("v_max3_u32 v%d, v%d, v%d, v%d" % (t, t, rs[0], rs[1])); rs = rs[2:]
        else:
            A("v_max_u32 v%d, v%d, v%d" % (t, t, rs[0])); rs = rs[1:]
    A("v_cmp_eq_u32 vcc, -1, v%d" % t)
    if sleep:
        A("s_cbranch_vccz %s" % lo)
        A("s_sleep %d" % sleep)
        A("s_branch %s" % lp)
        A.label(lo)
    else:
        A("s_cbranch_vccnz %s" % lp)

def allreduce_rows(reg, tmp, op):
    A("v_mov_b32 v%d, v%d" % (tmp, reg))
    A("v_permlane32_swap_b32 v%d, v%d" % (reg, tmp))
    A("%s v%d, v%d, v%d" % (op, reg, reg, tmp))
    A("v_mov_b32 v%d, v%d" % (tmp, reg))
    A("v_permlane16_swap_b32 v%d, v%d" % (reg, tmp))
    A("%s v%d, v%d, v%d" % (op, reg, reg, tmp))

DPPF = "row_mask:0xf bank_mask:0xf"

def dma(voff, sbase_lo, sbase_hi, n, gstep, lds0, lstep=1024, slds=None):
    for t in range(n):
        if t:
            A("s_add_u32 s44, s44, %d" % gstep)
            A("s_addc_u32 s45, s45, 0")
        if slds is None:
            A("s_mov_b32 m0, %d" % (lds0 + t * lstep))
        else:
            A("s_add_u32 m0, %s, %d" % (slds, lds0 + t * lstep))
        A("global_load_lds_dwordx4 %s, %s%s" % (voff, sTB, NT))

def colsum():
    for s in range(14):
        A("v_mfma_f32_16x16x32_bf16 %s, %s, %s, %s" % (v(LAC, 4), v(ONES, 4), a(aRW + 4 * s), "0" if s == 0 else v(LAC, 4)))
    A("v_mov_b32 %s, v%d" % (vCS, LAC))

def gemv14():
    acc, sx, sxx, tm, mean, rs = T[0], T[1], T[2], T[3], T[4], T[5]
    stat = []
    for k in range(4):
        stat.append("v_dot2_f32_bf16 v%d, v%d, v%d, %s" % (sx, XQ + k, ONES, "0" if k == 0 else "v%d" % sx))
        stat.append("v_dot2_f32_bf16 v%d, v%d, v%d, %s" % (sxx, XQ + k, XQ + k, "0" if k == 0 else "v%d" % sxx))
    stat.append("v_cndmask_b32 v%d, 0, v%d, %s" % (sx, sx, sM14))
    stat.append("v_cndmask_b32 v%d, 0, v%d, %s" % (sxx, sxx, sM14))
    for m in ("quad_perm:[1,0,3,2]", "quad_perm:[2,3,0,1]", "row_half_mirror", "row_mirror"):
        stat.append("v_add_f32_dpp v%d, v%d, v%d %s %s" % (sx, sx, sx, m, DPPF))
        stat.append("v_add_f32_dpp v%d, v%d, v%d %s %s" % (sxx, sxx, sxx, m, DPPF))
    stat += [
        "v_permlane32_swap_b32 v%d, v%d" % (sx, sxx),
        "v_add_f32 v%d, v%d, v%d" % (sx, sx, sxx),
        "v_mov_b32 v%d, v%d" % (sxx, sx),
        "v_permlane16_swap_b32 v%d, v%d" % (sx, sxx),
        "v_add_f32 v%d, v%d, v%d" % (sx, sx, sxx),
        "v_readlane_b32 %s, v%d, 0" % (sA, sx),
        "v_readlane_b32 %s, v%d, 32" % (sB, sx),
        "v_mul_f32 v%d, %s, %s" % (mean, sA, vINV448),
        "v_mul_f32 v%d, %s, %s" % (rs, sB, vINV448),
        "v_fma_f32 v%d, -v%d, v%d, v%d" % (rs, mean, mean, rs),
        "v_max_f32 v%d, 0, v%d" % (rs, rs),
        "v_add_f32 v%d, %s, v%d" % (rs, f32(1e-5), rs),
        "v_rsq_f32 v%d, v%d" % (rs, rs),
    ]
    adds = []
    for s in range(14):
        d = ACC + 4 * s + (s & 3)
        adds.append("v_add_f32_dpp v%d, v%d, v%d quad_perm:[0,1,2,3] row_mask:0x%x bank_mask:0xf" % (acc, d, acc, 1 << (s >> 2)))
    A("v_mov_b32 v%d, 0" % acc)
    si = 0
    for s in range(14):
        A("v_mfma_f32_16x16x32_bf16 %s, %s, %s, 0" % (v(ACC + 4 * s, 4), v(XQ, 4), a(aRW + 4 * s)))
        for _ in range(2):
            if si < len(stat):
                A(stat[si]); si += 1
        if s >= 3:
            A(adds[s - 3])
    while si < len(stat):
        A(stat[si]); si += 1
    for s in range(11, 14):
        A(adds[s])
    allreduce_rows(acc, tm, "v_add_f32")
    A("v_fma_f32 v%d, -v%d, %s, v%d" % (acc, mean, vCS, acc))
    A("v_mul_f32 v%d, v%d, v%d" % (acc, acc, rs))

def pack_pairs_store(val, mask, voff, imm, intra=True, force_sc1=False):
    t2 = T[6]
    A("v_mov_b32_dpp v%d, v%d row_shl:1 %s" % (t2, val, DPPF))
    A("v_cvt_pk_bf16_f32 v%d, v%d, v%d" % (t2, val, t2))
    A("v_min_u32 v%d, -2, v%d" % (t2, t2))
    A("s_mov_b64 exec, 0x%x" % mask)
    st = "global_store_dword %s, v%d, %s offset:%d" % (voff, t2, sWS, imm)
    if force_sc1:
        A(st + " sc1")
    else:
        istore(st)
    A("s_mov_b64 exec, -1")

hdr = open(os.path.join(os.path.dirname(os.path.abspath(__file__)), "..", "cdna_kernels", NAME + ".s.ref")).read()
head_lines = []
for line in hdr.splitlines():
    if line.startswith("; @launch"):
        head_lines.append("; @launch grid=(256,1,1) block=(256,1,1) lds=%d" % LDS_BYTES)
    elif line.startswith(";"):
        head_lines.append(line)
    else:
        break
A.raw("\n".join(head_lines))
A.raw('.amdgcn_target "amdgcn-amd-amdhsa--gfx950"')
A.raw(".text")
A.raw(".globl %s" % KN)
A.raw(".p2align 8")
A.raw(".type %s,@function" % KN)
A.raw("%s:" % KN)

A("s_cmp_ge_u32 s2, 256")
A("s_cbranch_scc1 L_bail")
A("s_load_dwordx16 s[4:19], s[0:1], 0")
A("s_load_dwordx8 s[20:27], s[0:1], 64")
A("v_lshrrev_b32 v56, 6, v0")
A("v_and_b32 %s, 63, v0" % vLANE)
A("v_and_b32 %s, 15, v0" % vN)
A("v_readfirstlane_b32 %s, v56" % sW)
A("v_bfe_u32 %s, v0, 4, 2" % vGQ)
A("v_mov_b32 %s, 0" % vXEG)
A("v_mov_b32 %s, 0" % vCS)
A("v_mov_b32 v71, 0")
A("s_and_b32 %s, s2, 7" % sG)
A("s_lshr_b32 %s, s2, 3" % sR)
A("s_min_u32 %s, %s, 27" % (sT0, sR))
A("s_and_b32 %s, %s, 3" % (sRHO, sT0))
A("s_lshr_b32 %s, %s, 2" % (sGAM, sT0))
A("s_lshl_b32 %s, %s, 25" % (sT0, sG))
A("s_lshl_b32 %s, %s, 16" % (sT1, sR))
A("s_add_u32 %s, %s, %s" % (sT0, sT0, sT1))
A("s_lshl_b32 %s, %s, 14" % (sLV, sW))
A("s_add_u32 %s, %s, %s" % (sT0, sT0, sLV))
A("s_add_u32 %s, %s, 0x%x" % (sT0, sT0, KEY0 * 512))
A("v_lshlrev_b32 v56, 9, %s" % vN)
A("v_lshl_add_u32 v56, %s, 4, v56" % vGQ)
A("v_add_u32 v57, 0x2000, v56")
A("v_lshrrev_b32 v58, 3, %s" % vLANE)
A("v_and_b32 v62, 7, %s" % vLANE)
A("v_lshlrev_b32 v62, 4, v62")
A("v_lshl_add_u32 v58, v58, 9, v62")
A("v_add_u32 v59, 0x1000, v58")
A("v_add_u32 v60, 0x2000, v58")
A("v_add_u32 v61, 0x3000, v58")
A("s_waitcnt lgkmcnt(0)")
A("s_add_u32 s40, s6, %s" % sT0)
A("s_addc_u32 s41, s7, 0")
A("s_add_u32 s42, s8, %s" % sT0)
A("s_addc_u32 s43, s9, 0")
if OPT["stamps"]:
    A("s_lshl_b32 %s, s2, 2" % sT1)
    A("s_add_u32 %s, %s, %s" % (sT1, sT1, sW))
    A("s_lshl_b32 %s, %s, 8" % (sT1, sT1))
    A("s_add_u32 %s, %s, 0x%x" % (sT1, sT1, STAMP))
    A("s_add_u32 s54, s26, %s" % sT1)
    A("s_addc_u32 s55, s27, 0")
    A("v_mov_b32 v131, 0")
stamp("start")

def load_K():
    for Tt in range(2):
        for s in range(8):
            A("global_load_dwordx4 %s, v%d, %s offset:%d%s" % (a(aK + (Tt * 8 + s) * 4), 56 + Tt, sKB, s * 64, NT))

def load_V_wo():
    for b in range(4):
        for u in range(4):
            A("s_add_u32 m0, %s, %d" % (sLV, L_V + (4 * b + u) * 1024 - b * 128))
            A("global_load_lds_dwordx4 v%d, %s offset:%d%s" % (58 + u, sVB, b * 128, NT))
    A("s_lshl_b32 %s, %s, 9" % (sT0, sG))
    A("s_lshl_b32 %s, %s, 7" % (sT1, sRHO))
    A("s_add_u32 %s, %s, %s" % (sT0, sT0, sT1))
    A("s_lshl_b32 %s, %s, 5" % (sT1, sW))
    A("s_add_u32 %s, %s, %s" % (sT0, sT0, sT1))
    A("s_mul_i32 %s, %s, 896" % (sT0, sT0))
    A("s_lshl_b32 %s, %s, 7" % (sT1, sGAM))
    A("s_add_u32 %s, %s, %s" % (sT0, sT0, sT1))
    A("s_add_u32 s44, s12, %s" % sT0)
    A("s_addc_u32 s45, s13, 0")
    A("v_lshrrev_b32 v63, 3, %s" % vLANE)
    A("v_mul_u32_u24 v63, 896, v63")
    A("v_add_u32 v63, v63, v62")
    A("s_lshl_b32 %s, %s, 12" % (sT2, sW))
    dma("v63", None, None, 4, 7168, L_WO, slds=sT2)

A("s_cmp_eq_u32 %s, 0" % sW)
A("s_cbranch_scc1 L_ld_w0")
A("s_cmp_eq_u32 %s, 1" % sW)
A("s_cbranch_scc1 L_ld_w1")
load_K()
load_V_wo()
A("s_branch L_ld_done")

A.label("L_ld_w1")
A("v_mov_b32 v64, -1")
A("v_mov_b32 v65, -1")
A("v_mov_b32 v66, -1")
A("v_mov_b32 v67, -1")
A("s_lshl_b32 %s, %s, 16" % (sT0, sG))
A("s_lshl_b32 %s, %s, 11" % (sT1, sR))
A("s_add_u32 %s, %s, %s" % (sT0, sT0, sT1))
A("s_add_u32 %s, %s, 0x%x" % (sT0, sT0, OMB))
A("v_lshlrev_b32 v68, 4, %s" % vLANE)
A("v_add_u32 v69, %s, v68" % sT0)
A("global_store_dwordx4 v69, v[64:67], %s sc1" % sWS)
A("global_store_dwordx4 v69, v[64:67], %s offset:1024 sc1" % sWS)
A("s_lshl_b32 %s, %s, 10" % (sT0, sG))
A("s_lshl_b32 %s, %s, 3" % (sT1, sR))
A("s_add_u32 %s, %s, %s" % (sT0, sT0, sT1))
A("s_add_u32 %s, %s, 0x%x" % (sT0, sT0, SMB))
A("v_lshl_add_u32 v69, %s, 8, %s" % (vLANE, sT0))
A("s_mov_b64 exec, 0xf")
A("global_store_dwordx2 v69, v[64:65], %s sc1" % sWS)
A("s_lshl_b32 %s, %s, 11" % (sT0, sG))
A("s_lshl_b32 %s, %s, 5" % (sT1, sR))
A("s_add_u32 %s, %s, %s" % (sT0, sT0, sT1))
A("s_add_u32 %s, %s, 0x%x" % (sT0, sT0, QMB))
A("v_lshrrev_b32 v69, 1, %s" % vLANE)
A("v_lshlrev_b32 v69, 10, v69")
A("v_and_b32 v70, 1, %s" % vLANE)
A("v_lshl_add_u32 v69, v70, 4, v69")
A("v_add_u32 v69, %s, v69" % sT0)
A("global_store_dwordx4 v69, v[64:67], %s sc1" % sWS)
A("s_lshl_b32 %s, %s, 10" % (sT0, sG))
A("s_lshl_b32 %s, %s, 4" % (sT1, sR))
A("s_add_u32 %s, %s, %s" % (sT0, sT0, sT1))
A("s_add_u32 %s, %s, 0x%x" % (sT0, sT0, HMB))
A("v_lshl_add_u32 v69, %s, 9, %s" % (vLANE, sT0))
A("s_mov_b64 exec, 0x3")
A("global_store_dwordx4 v69, v[64:67], %s sc1" % sWS)
A("s_cmp_ge_u32 %s, 28" % sR)
A("s_cbranch_scc1 L_rst_noxb")
A("s_lshl_b32 %s, %s, 14" % (sT0, sGAM))
A("s_lshl_b32 %s, %s, 9" % (sT1, sG))
A("s_add_u32 %s, %s, %s" % (sT0, sT0, sT1))
A("s_lshl_b32 %s, %s, 7" % (sT1, sRHO))
A("s_add_u32 %s, %s, %s" % (sT0, sT0, sT1))
A("s_add_u32 %s, %s, 0x%x" % (sT0, sT0, XB))
A("s_mov_b64 exec, 0xffffffff")
A("v_bfe_u32 v69, %s, 3, 1" % vLANE)
A("v_lshlrev_b32 v69, 13, v69")
A("v_lshl_add_u32 v69, %s, 12, v69" % vGQ)
A("v_add3_u32 v69, v69, v62, %s" % sT0)
A("global_store_dwordx4 v69, v[64:67], %s sc1" % sWS)
A.label("L_rst_noxb")
A("s_cmp_ge_u32 %s, 14" % sR)
A("s_cbranch_scc1 L_rst_done")
A("s_lshl_b32 %s, %s, 12" % (sT0, sG))
A("s_lshl_b32 %s, %s, 6" % (sT1, sR))
A("s_add_u32 %s, %s, %s" % (sT0, sT0, sT1))
A("s_add_u32 %s, %s, 0x%x" % (sT0, sT0, XL))
A("s_mov_b64 exec, 0xfff")
A("v_lshrrev_b32 v69, 2, %s" % vLANE)
A("v_lshlrev_b32 v69, 10, v69")
A("v_and_b32 v70, 3, %s" % vLANE)
A("v_lshl_add_u32 v69, v70, 4, v69")
A("v_add_u32 v69, %s, v69" % sT0)
A("global_store_dwordx4 v69, v[64:67], %s sc1" % sWS)
A("s_lshl_b32 %s, %s, 11" % (sT0, sR))
A("s_lshl_b32 %s, %s, 7" % (sT1, sG))
A("s_add_u32 %s, %s, %s" % (sT0, sT0, sT1))
A("s_add_u32 %s, %s, 0x%x" % (sT0, sT0, XE))
A("s_mov_b64 exec, 0xffff")
A("v_lshrrev_b32 v69, 3, %s" % vLANE)
A("v_lshlrev_b32 v69, 10, v69")
A("v_add3_u32 v69, v69, v62, %s" % sT0)
A("global_store_dwordx4 v69, v[64:67], %s sc1" % sWS)
A.label("L_rst_done")
A("s_mov_b64 exec, -1")
A("s_min_u32 %s, %s, 13" % (sT0, sR))
A("s_lshl_b32 %s, %s, 6" % (sT0, sT0))
A("v_and_b32 v69, 7, %s" % vLANE)
A("v_lshlrev_b32 v69, 3, v69")
A("v_lshrrev_b32 v70, 5, %s" % vLANE)
A("v_lshl_add_u32 v69, v70, 2, v69")
A("v_add_u32 v71, %s, v69" % sT0)
A("global_load_dword v72, v71, %s" % sX)
load_K()
load_V_wo()
A("s_waitcnt vmcnt(36)")
A("v_lshlrev_b32 %s, 16, v72" % vXO0)
A("v_and_b32 %s, 0xffff0000, v72" % vXO1)
A("s_getreg_b32 %s, hwreg(HW_REG_XCC_ID)" % sXCC)
A("s_and_b32 %s, %s, 15" % (sXCC, sXCC))
A("s_or_b32 %s, %s, 0x80" % (sT1, sXCC))
A("s_lshl_b32 %s, %s, 5" % (sT0, sG))
A("s_add_u32 %s, %s, %s" % (sT0, sT0, sR))
A("v_mov_b32 v69, %s" % sT0)
A("v_mov_b32 v70, %s" % sT1)
A("s_mov_b64 exec, 1")
A("global_store_byte v69, v70, %s sc1" % sDBG)
A("s_mov_b64 exec, -1")
stamp("flag")
A("s_branch L_ld_done")

A.label("L_ld_w0")
A("v_lshl_add_u32 v64, %s, 2, %s" % (vN, vGQ))
A("v_min_u32 v64, 55, v64")
A("v_lshlrev_b32 v64, 4, v64")
A("global_load_dwordx4 %s, v64, %s" % (v(XQ, 4), sX))
A("s_lshl_b32 %s, %s, 10" % (sT0, sG))
A("s_lshl_b32 %s, %s, 5" % (sT1, sR))
A("s_add_u32 %s, %s, %s" % (sT0, sT0, sT1))
A("s_add_u32 s44, s10, %s" % sT0)
A("s_addc_u32 s45, s11, 0")
A("v_lshrrev_b32 v65, 1, %s" % vLANE)
A("v_lshlrev_b32 v65, 13, v65")
A("v_and_b32 v66, 1, %s" % vLANE)
A("v_lshl_add_u32 v65, v66, 4, v65")
dma("v65", None, None, 14, 262144, L_WQ)
load_K()
A.label("L_ld_done")

A("v_mov_b32 v%d, 0x3f803f80" % ONES)
A("v_mov_b32 v%d, 0x3f803f80" % (ONES + 1))
A("v_mov_b32 v%d, 0x3f803f80" % (ONES + 2))
A("v_mov_b32 v%d, 0x3f803f80" % (ONES + 3))
A("v_mov_b32 %s, %s" % (vINV448, f32(1.0 / 448)))
A("s_mov_b32 s48, 0x3fff3fff")
A("s_mov_b32 s49, 0x3fff3fff")
A("s_mov_b32 %s, %s" % (sCS, f32(LOG2E / 16.0)))
A("s_lshl_b32 %s, %s, 11" % (sT0, sG))
A("s_add_u32 %s, %s, 0x%x" % (sT0, sT0, QMB))
A("v_and_b32 v64, 1, %s" % vN)
A("v_lshlrev_b32 v64, 9, v64")
A("v_lshrrev_b32 v65, 1, %s" % vN)
A("v_lshl_add_u32 v64, v65, 6, v64")
A("v_lshl_add_u32 v64, %s, 4, v64" % vGQ)
A("v_add_u32 %s, %s, v64" % (vQP, sT0))
A("s_lshl_b32 %s, %s, 16" % (sT0, sG))
A("s_add_u32 %s, %s, 0x%x" % (sT0, sT0, OMB))
A("s_lshl_b32 %s, %s, 11" % (sT1, sR))
A("s_add_u32 %s, %s, %s" % (sT1, sT1, sT0))
A("v_lshl_add_u32 %s, %s, 2, %s" % (vOPUB, vTID, sT1))
A("s_lshl_b32 %s, %s, 8" % (sT1, sRHO))
A("s_add_u32 %s, %s, %s" % (sT0, sT0, sT1))
A("s_lshl_b32 %s, %s, 6" % (sT1, sW))
A("s_add_u32 %s, %s, %s" % (sT0, sT0, sT1))
A("v_lshlrev_b32 v64, 11, %s" % vN)
A("v_lshl_add_u32 v64, %s, 4, v64" % vGQ)
A("v_add_u32 %s, %s, v64" % (vA0, sT0))
A("v_add_u32 %s, 0x8000, %s" % (vA1, vA0))
A("s_lshl_b32 %s, %s, 10" % (sT0, sG))
A("s_add_u32 %s, %s, 0x%x" % (sT0, sT0, SMB))
A("s_lshr_b32 %s, %s, 1" % (sT1, sW))
A("s_lshl_b32 %s, %s, 8" % (sT1, sT1))
A("s_lshl_b32 %s, %s, 3" % (sT2, sR))
A("s_add_u32 %s, %s, %s" % (sT1, sT1, sT2))
A("s_add_u32 %s, %s, %s" % (sT1, sT1, sT0))
A("v_mov_b32 %s, %s" % (vSPUB, sT1))
A("s_lshr_b32 %s, %s, 1" % (sT1, sRHO))
A("s_lshl_b32 %s, %s, 8" % (sT1, sT1))
A("s_add_u32 %s, %s, %s" % (sT0, sT0, sT1))
A("v_and_b32 v64, 3, %s" % vN)
A("v_lshl_add_u32 v64, %s, 2, v64" % vGQ)
A("v_bfe_u32 v65, %s, 2, 1" % vN)
A("v_lshl_add_u32 v64, v65, 4, v64")
A("v_lshl_add_u32 %s, v64, 3, %s" % (vSTP, sT0))
A("s_lshl_b32 %s, %s, 14" % (sT0, sGAM))
A("s_lshl_b32 %s, %s, 9" % (sT1, sG))
A("s_add_u32 %s, %s, %s" % (sT0, sT0, sT1))
A("s_lshl_b32 %s, %s, 7" % (sT1, sRHO))
A("s_add_u32 %s, %s, %s" % (sT0, sT0, sT1))
A("s_add_u32 %s, %s, 0x%x" % (sT0, sT0, XB + 2048))
A("v_lshrrev_b32 v64, 5, %s" % vLANE)
A("v_lshlrev_b32 v64, 13, v64")
A("v_and_b32 v65, 31, %s" % vLANE)
A("v_lshl_add_u32 v64, v65, 2, v64")
A("v_add_u32 %s, %s, v64" % (vXBPUB, sT0))
A("s_lshl_b32 %s, %s, 11" % (sT0, sW))
A("s_add_u32 %s, %s, %d" % (sT0, sT0, L_OW))
A("v_and_b32 v64, 1, %s" % vN)
A("v_lshlrev_b32 v64, 10, v64")
A("v_lshl_add_u32 v64, %s, 5, v64" % vGQ)
A("v_add_u32 %s, %s, v64" % (vLOW, sT0))
A("v_lshlrev_b32 v64, 3, %s" % vTID)
A("v_add_u32 %s, %d, v64" % (vLCR, L_OW))
A("s_lshl_b32 %s, %s, 3" % (sT0, sW))
A("s_add_u32 %s, %s, %d" % (sT0, sT0, L_ST))
A("v_and_b32 v64, 1, %s" % vN)
A("v_lshl_add_u32 %s, v64, 5, %s" % (vLST, sT0))
A("v_lshlrev_b32 v64, 4, %s" % vLANE)
A("v_add_u32 %s, %d, v64" % (vLQ, L_Q))
A("s_lshl_b32 %s, %s, 8" % (sT0, sW))
A("s_add_u32 %s, %s, %d" % (sT0, sT0, L_RED))
A("v_lshl_add_u32 %s, %s, 2, %s" % (vLRED, vLANE, sT0))

A("s_min_u32 %s, %s, 13" % (sT3, sR))
A("v_lshl_add_u32 v64, %s, 2, %s" % (vN, vGQ))
A("s_cmp_eq_u32 %s, 1" % sW)
A("s_cbranch_scc1 L_ad_w1")
A("s_cmp_eq_u32 %s, 2" % sW)
A("s_cbranch_scc1 L_ad_w2")
A("s_lshl_b32 %s, %s, 12" % (sT0, sG))
A("s_add_u32 %s, %s, 0x%x" % (sT0, sT0, XL))
A("v_min_u32 v64, 55, v64")
A("v_lshl_add_u32 %s, v64, 4, %s" % (vRPOLL, sT0))
A("v_lshrrev_b32 v65, 1, %s" % vN)
A("s_cmp_eq_u32 %s, 3" % sW)
A("s_cbranch_scc1 L_ad_w3")
A("s_lshl_b32 %s, %s, 11" % (sT0, sG))
A("s_lshl_b32 %s, %s, 5" % (sT1, sR))
A("s_add_u32 %s, %s, %s" % (sT0, sT0, sT1))
A("s_add_u32 %s, %s, 0x%x" % (sT0, sT0, QMB))
A("v_lshl_add_u32 %s, v65, 2, %s" % (vRPUB, sT0))
A("s_branch L_ad_done")
A.label("L_ad_w3")
A("s_lshl_b32 %s, %s, 10" % (sT0, sG))
A("s_lshl_b32 %s, %s, 4" % (sT1, sR))
A("s_add_u32 %s, %s, %s" % (sT0, sT0, sT1))
A("s_add_u32 %s, %s, 0x%x" % (sT0, sT0, HMB))
A("v_lshl_add_u32 %s, v65, 2, %s" % (vRPUB, sT0))
A("s_branch L_ad_done")
A.label("L_ad_w2")
A("s_lshl_b32 %s, %s, 10" % (sT0, sG))
A("s_add_u32 %s, %s, 0x%x" % (sT0, sT0, HMB))
A("v_min_u32 v64, 27, v64")
A("v_lshl_add_u32 %s, v64, 4, %s" % (vRPOLL, sT0))
A("s_lshl_b32 %s, %s, 11" % (sT0, sT3))
A("s_lshl_b32 %s, %s, 7" % (sT1, sG))
A("s_add_u32 %s, %s, %s" % (sT0, sT0, sT1))
A("s_add_u32 %s, %s, 0x%x" % (sT0, sT0, XE))
A("v_lshl_add_u32 %s, %s, 2, %s" % (vRPUB, vLANE, sT0))
A("s_branch L_ad_done")
A.label("L_ad_w1")
A("s_lshl_b32 %s, %s, 13" % (sT0, sT3))
A("s_add_u32 %s, %s, 0x%x" % (sT0, sT0, XB + 4096))
A("v_lshl_add_u32 %s, %s, 4, %s" % (vRPOLL, vLANE, sT0))
A("s_lshl_b32 %s, %s, 11" % (sT0, sT3))
A("s_add_u32 %s, %s, 0x%x" % (sT0, sT0, XE))
A("v_lshl_add_u32 %s, %s, 4, %s" % (vXEG, vLANE, sT0))
A("s_lshl_b32 %s, %s, 12" % (sT0, sG))
A("s_add_u32 %s, %s, 0x%x" % (sT0, sT0, XL))
A("v_add_u32 %s, %s, v71" % (vRPUB, sT0))
A("v_mov_b32 %s, v71" % vCS)
A.label("L_ad_done")

A("v_lshrrev_b32 v64, 2, %s" % vN)
A("v_and_b32 v65, 3, %s" % vN)

def trpair(dst_a, vaddr, off, second):
    A("ds_read_b64_tr_b16 %s, %s offset:%d" % (a(dst_a, 2), vaddr, off))
    A("ds_read_b64_tr_b16 %s, %s offset:%d" % (a(dst_a + 2, 2), vaddr, off + second))

def tr_lane(dst, rowmul8, rowbytes_shift, cshift, base_imm=None, base_s=None):
    A("v_lshl_add_u32 v66, %s, %d, v64" % (vGQ, rowmul8))
    A("v_lshlrev_b32 v66, %d, v66" % rowbytes_shift)
    A("v_lshl_add_u32 v66, v65, %d, v66" % cshift)
    if base_s is not None:
        A("v_add_u32 %s, %s, v66" % (dst, base_s))
    else:
        A("v_add_u32 %s, %d, v66" % (dst, base_imm))

tr_lane(vLTR, 2, 7, 4, base_s=sLV)
A("s_lshl_b32 %s, %s, 12" % (sT0, sW))
A("s_add_u32 %s, %s, %d" % (sT0, sT0, L_WO))
tr_lane("v128", 3, 7, 3, base_s=sT0)
A("s_cmp_eq_u32 %s, 2" % sW)
A("s_cbranch_scc1 L_tb_w2")
A("s_cmp_eq_u32 %s, 3" % sW)
A("s_cbranch_scc1 L_tb_w3")
tr_lane("v129", 3, 5, 3, base_imm=L_WQ)
A("s_branch L_tb_done")
A.label("L_tb_w2")
tr_lane("v129", 3, 6, 3, base_imm=L_WD)
A("s_branch L_tb_done")
A.label("L_tb_w3")
A("v_lshl_add_u32 v66, %s, 3, v64" % vGQ)
A("v_lshlrev_b32 v66, 4, v66")
A("v_and_b32 v67, 1, v65")
A("v_lshl_add_u32 v66, v67, 3, v66")
A("v_lshrrev_b32 v67, 1, v65")
A("v_mul_u32_u24 v67, 7168, v67")
A("v_add3_u32 v129, v66, v67, %d" % 0)
A("v_add_u32 v129, %d, v129" % L_WG)
A.label("L_tb_done")

def wave0_q_phase(l):
    if l == 0:
        A("s_waitcnt vmcnt(16)")
        for s in range(14):
            trpair(aRW + 4 * s, "v129", s * 1024, 128)
        A("s_waitcnt lgkmcnt(0)")
        colsum()
        stamp("wq ready")
    else:
        poll(["global_load_dwordx4 %s, %s, %s offset:%d sc1" % (v(XQ, 4), vRPOLL, sWS, 1024)], range(XQ, XQ + 4))
        stamp("x2 arrived")
    gemv14()
    pack_pairs_store(T[0], 0x5555, vRPUB, l * 1024, force_sc1=(l == 0))
    stamp("q published")
    if l == 0:
        lp = L("Lflag")
        A("v_lshlrev_b32 v64, 2, %s" % vLANE)
        A("s_mov_b32 %s, %d" % (sCNT, POLL_MAX))
        A.label(lp)
        A("global_load_dword v65, v64, %s sc1" % sDBG)
        A("s_sub_u32 %s, %s, 1" % (sCNT, sCNT))
        A("s_cbranch_scc1 L_bail")
        A("s_waitcnt vmcnt(0)")
        A("v_and_b32 v66, 0x80808080, v65")
        A("v_cmp_ne_u32 vcc, 0x80808080, v66")
        lo = L("Lflagok")
        A("s_cbranch_vccz %s" % lo)
        A("s_sleep 4")
        A("s_branch %s" % lp)
        A.label(lo)
        A("s_getreg_b32 %s, hwreg(HW_REG_XCC_ID)" % sXCC)
        A("s_and_b32 %s, %s, 15" % (sXCC, sXCC))
        A("s_or_b32 %s, %s, 0x80" % (sT0, sXCC))
        A("s_mul_i32 %s, %s, 0x01010101" % (sT0, sT0))
        A("v_cmp_eq_u32 vcc, %s, v65" % sT0)
        A("s_lshl_b32 %s, %s, 3" % (sT1, sG))
        A("s_lshr_b64 s[56:57], vcc, %s" % sT1)
        A("s_and_b32 %s, s56, 0xff" % sT1)
        A("s_cmp_eq_u32 %s, 0xff" % sT1)
        A("s_cselect_b32 %s, 1, 0" % sPURE)
        if OPT.get("noplain"):
            A("s_mov_b32 %s, 0" % sPURE)
        A("v_mov_b32 v66, %s" % sPURE)
        A("v_mov_b32 v67, %d" % L_PURE)
        A("ds_write_b32 v67, v66")
        stamp("flags ok")
    poll(["global_load_dwordx4 %s, %s, %s offset:%d sc1" % (v(XQ, 4), vQP, sWS, l * 1024)], range(XQ, XQ + 4))
    A("ds_write_b128 %s, %s" % (vLQ, v(XQ, 4)))
    A("s_waitcnt lgkmcnt(0)")
    stamp("q arrived")

def attention(l):
    lw = L("Lnotw0")
    A("s_cmp_lg_u32 %s, 0" % sW)
    A("s_cbranch_scc1 %s" % lw)
    wave0_q_phase(l)
    A.label(lw)
    A("s_barrier")
    A("ds_read_b128 %s, %s" % (v(XQ, 4), vLQ))
    if l == 0:
        A("v_mov_b32 v67, %d" % L_PURE)
        A("ds_read_b32 v66, v67")
        lw2 = L("Lnotw0b")
        A("s_cmp_lg_u32 %s, 0" % sW)
        A("s_cbranch_scc1 %s" % lw2)
        A("v_lshrrev_b32 v58, 3, %s" % vLANE)
        A("v_and_b32 v62, 7, %s" % vLANE)
        A("v_lshlrev_b32 v62, 4, v62")
        A("v_lshl_add_u32 v58, v58, 9, v62")
        A("v_add_u32 v59, 0x1000, v58")
        A("v_add_u32 v60, 0x2000, v58")
        A("v_add_u32 v61, 0x3000, v58")
        load_V_wo()
        A.label(lw2)
        A("s_waitcnt lgkmcnt(0)")
        A("v_readfirstlane_b32 %s, v66" % sPURE)
        A("s_waitcnt vmcnt(20)")
        stamp("K landed")
    else:
        A("s_waitcnt lgkmcnt(0)")
    for s in range(8):
        if s == 0:
            bq = XQ
        else:
            bq = BF0 if (s & 1) else BF1
            for k in range(4):
                A("v_mov_b32_dpp v%d, v%d row_shl:%d %s" % (bq + k, XQ + k, 2 * s, DPPF))
        for Tt in range(2):
            S = S0 if Tt == 0 else S1
            A("v_mfma_f32_16x16x32_bf16 %s, %s, %s, %s" % (v(S, 4), a(aK + (Tt * 8 + s) * 4), v(bq, 4), "0" if s == 0 else v(S, 4)))
    if l == 0:
        pass
    m, tm, mc = T[0], T[1], T[2]
    A("v_max3_f32 v%d, v%d, v%d, v%d" % (m, S0, S0 + 1, S0 + 2))
    A("v_max3_f32 v%d, v%d, v%d, v%d" % (tm, S0 + 3, S1, S1 + 1))
    A("v_max3_f32 v%d, v%d, v%d, v%d" % (m, m, S1 + 2, S1 + 3))
    A("v_max_f32 v%d, v%d, v%d" % (m, m, tm))
    allreduce_rows(m, tm, "v_max_f32")
    A("v_mul_f32 v%d, %s, v%d" % (mc, sCS, m))
    for i in range(8):
        r = S0 + i
        A("v_fma_f32 v%d, v%d, %s, -v%d" % (r, r, sCS, mc))
    for i in range(8):
        r = S0 + i
        A("v_exp_f32 v%d, v%d" % (r, r))
    for k in range(4):
        A("v_cvt_pk_bf16_f32 v%d, v%d, v%d" % (PF + k, S0 + 2 * k, S0 + 2 * k + 1))
    A("v_mfma_f32_16x16x32_bf16 %s, %s, %s, 0" % (v(LAC, 4), v(ONES, 4), v(PF, 4)))
    stamp("softmax done")
    for b in range(4):
        if l == 0:
            A("s_waitcnt vmcnt(%d)" % (16 - 4 * (b + 1) + 4))
            for t4 in range(4):
                ud, odd = 2 * b + (t4 >> 1), t4 & 1
                t = 2 * ud + odd
                trpair(aV + 4 * t, vLTR, b * 4096 + (ud & 1) * 64 + odd * 8, 2048)
            A("s_waitcnt lgkmcnt(0)")
        for t4 in range(4):
            t = 4 * b + t4
            A("v_mfma_f32_16x16x32_bf16 %s, %s, %s, 0" % (v(ACC + 4 * t, 4), a(aV + 4 * t), v(PF, 4)))
    stamp("PV issued")
    A("v_mov_b32 v%d, v%d" % (T[3], LAC))
    A("s_mov_b64 exec, 0x3")
    A("ds_write_b64 %s, %s" % (vLST, v(T[2], 2)))
    A("s_mov_b32 s56, 0x00030003")
    A("s_mov_b32 s57, 0x00030003")
    A("s_mov_b64 exec, s[56:57]")
    for t in range(16):
        ud, odd = t >> 1, t & 1
        A("ds_write_b128 %s, %s offset:%d" % (vLOW, v(ACC + 4 * t, 4), ud * 128 + odd * 16))
    A("s_mov_b64 exec, -1")
    A("s_waitcnt lgkmcnt(0)")
    A("s_barrier")
    A("s_lshr_b32 %s, %s, 1" % (sT0, sW))
    A("s_lshl_b32 %s, %s, 5" % (sT0, sT0))
    A("s_add_u32 %s, %s, %d" % (sT0, sT0, L_ST))
    A("v_mov_b32 v%d, %s" % (T[0], sT0))
    A("ds_read_b128 v[64:67], v%d" % T[0])
    A("ds_read_b128 v[68:71], v%d offset:16" % T[0])
    for w in range(4):
        A("ds_read_b64 %s, %s offset:%d" % (v(72 + 2 * w, 2), vLCR, w * 2048))
    A("s_waitcnt lgkmcnt(4)")
    A("v_max3_f32 v80, v64, v66, v68")
    A("v_max_f32 v80, v80, v70")
    for w in range(4):
        A("v_sub_f32 v%d, v%d, v80" % (64 + 2 * w, 64 + 2 * w))
    for w in range(4):
        A("v_exp_f32 v%d, v%d" % (64 + 2 * w, 64 + 2 * w))
    A("s_waitcnt lgkmcnt(0)")
    A("v_mul_f32 v82, v64, v72")
    A("v_mul_f32 v83, v64, v73")
    A("v_mul_f32 v81, v64, v65")
    for w in range(1, 4):
        A("v_fmac_f32 v82, v%d, v%d" % (64 + 2 * w, 72 + 2 * w))
        A("v_fmac_f32 v83, v%d, v%d" % (64 + 2 * w, 73 + 2 * w))
        A("v_fmac_f32 v81, v%d, v%d" % (64 + 2 * w, 65 + 2 * w))
    A("v_cvt_pk_bf16_f32 v82, v82, v83")
    A("v_min_u32 v82, -2, v82")
    istore("global_store_dword %s, v82, %s offset:%d" % (vOPUB, sWS, l * 1024))
    A("v_min_u32 v80, -2, v80")
    A("v_min_u32 v81, -2, v81")
    ls = L("Lnost")
    A("s_and_b32 %s, %s, 1" % (sT0, sW))
    A("s_cbranch_scc1 %s" % ls)
    A("s_mov_b64 exec, 1")
    istore("global_store_dwordx2 %s, v[80:81], %s offset:%d" % (vSPUB, sWS, l * 512))
    A("s_mov_b64 exec, -1")
    A.label(ls)
    stamp("O published")

def outproj(l):
    le = L("Lnop3")
    A("s_cmp_ge_u32 %s, 28" % sR)
    A("s_cbranch_scc1 %s" % le)
    if l == 0:
        A("s_waitcnt vmcnt(0)")
        for nt in range(4):
            trpair(aWO + 4 * nt, "v128", nt * 32, 512)
    poll(["global_load_dwordx4 v[24:27], %s, %s offset:%d sc1" % (vA0, sWS, l * 1024),
          "global_load_dwordx4 v[28:31], %s, %s offset:%d sc1" % (vA1, sWS, l * 1024),
          "global_load_dwordx2 v[32:33], %s, %s offset:%d sc1" % (vSTP, sWS, l * 512)], range(24, 34))
    if l == 0:
        A("s_waitcnt lgkmcnt(0)")
    stamp("O arrived")
    M, tm, e, Ls = T[0], T[1], T[2], T[3]
    st = ["v_mov_b32 v%d, v32" % M]
    for mm in ("quad_perm:[1,0,3,2]", "quad_perm:[2,3,0,1]", "row_half_mirror"):
        st.append("v_max_f32_dpp v%d, v%d, v%d %s %s" % (M, M, M, mm, DPPF))
    st += ["v_mov_b32 v%d, v%d" % (tm, M), "v_permlane32_swap_b32 v%d, v%d" % (M, tm), "v_max_f32 v%d, v%d, v%d" % (M, M, tm),
           "v_mov_b32 v%d, v%d" % (tm, M), "v_permlane16_swap_b32 v%d, v%d" % (M, tm), "v_max_f32 v%d, v%d, v%d" % (M, M, tm),
           "v_sub_f32 v%d, v32, v%d" % (e, M), "v_exp_f32 v%d, v%d" % (e, e), "v_mul_f32 v%d, v%d, v33" % (Ls, e)]
    for mm in ("quad_perm:[1,0,3,2]", "quad_perm:[2,3,0,1]", "row_half_mirror"):
        st.append("v_add_f32_dpp v%d, v%d, v%d %s %s" % (Ls, Ls, Ls, mm, DPPF))
    st += ["v_mov_b32 v%d, v%d" % (tm, Ls), "v_permlane32_swap_b32 v%d, v%d" % (Ls, tm), "v_add_f32 v%d, v%d, v%d" % (Ls, Ls, tm),
           "v_mov_b32 v%d, v%d" % (tm, Ls), "v_permlane16_swap_b32 v%d, v%d" % (Ls, tm), "v_add_f32 v%d, v%d, v%d" % (Ls, Ls, tm),
           "v_rcp_f32 v%d, v%d" % (Ls, Ls), "v_mul_f32 v%d, v%d, v%d" % (e, e, Ls)]
    si = 0
    for nt in range(4):
        for mt in range(2):
            A("v_mfma_f32_16x16x32_bf16 %s, %s, %s, 0" % (v(ACC + (nt * 2 + mt) * 4, 4), v(24 + 4 * mt, 4), a(aWO + 4 * nt)))
            for _ in range(3):
                if si < len(st):
                    A(st[si]); si += 1
    while si < len(st):
        A(st[si]); si += 1
    R0 = 100
    for k in range(8):
        mt, j = k >> 2, k & 3
        for nt in range(4):
            op = "v_mul_f32_dpp" if k == 0 else "v_fmac_f32_dpp"
            A("%s v%d, v%d, v%d row_newbcast:%d %s" % (op, R0 + nt, e, ACC + (nt * 2 + mt) * 4 + j, k, DPPF))
    A("v_permlane32_swap_b32 v%d, v%d" % (R0, R0 + 2))
    A("v_permlane32_swap_b32 v%d, v%d" % (R0 + 1, R0 + 3))
    A("v_add_f32 v%d, v%d, v%d" % (R0, R0, R0 + 2))
    A("v_add_f32 v%d, v%d, v%d" % (R0 + 1, R0 + 1, R0 + 3))
    A("v_permlane16_swap_b32 v%d, v%d" % (R0, R0 + 1))
    A("v_add_f32 v%d, v%d, v%d" % (R0, R0, R0 + 1))
    A("ds_write_b32 %s, v%d" % (vLRED, R0))
    A("s_waitcnt lgkmcnt(0)")
    A("s_barrier")
    ln = L("Lnotw0c")
    A("s_cmp_lg_u32 %s, 0" % sW)
    A("s_cbranch_scc1 %s" % ln)
    for w in range(1, 4):
        A("ds_read_b32 v%d, %s offset:%d" % (R0 + w, vLRED, w * 256))
    A("s_waitcnt lgkmcnt(0)")
    A("v_add_f32 v%d, v%d, v%d" % (R0, R0, R0 + 1))
    A("v_add_f32 v%d, v%d, v%d" % (R0 + 2, R0 + 2, R0 + 3))
    A("v_add_f32 v%d, v%d, v%d" % (R0, R0, R0 + 2))
    A("v_min_u32 v%d, -2, v%d" % (R0, R0))
    A("global_store_dword %s, v%d, %s offset:%d sc1" % (vXBPUB, R0, sWS, l * 4096 - 2048))
    stamp("XB published")
    A.label(ln)
    A.label(le)

def stage_finish(nload, final, sigma):
    for t in range(1, nload):
        for k in range(4):
            A("v_add_f32 v%d, v%d, v%d" % (64 + k, 64 + k, 64 + 4 * t + k))
    A("v_permlane32_swap_b32 v64, v66")
    A("v_permlane32_swap_b32 v65, v67")
    A("v_add_f32 v64, v64, v66")
    A("v_add_f32 v65, v65, v67")
    A("v_mov_b32 v66, v64")
    A("v_mov_b32 v67, v65")
    A("v_permlane16_swap_b32 v64, v66")
    A("v_permlane16_swap_b32 v65, v67")
    A("v_add_f32 v64, v64, v66")
    A("v_add_f32 v65, v65, v67")
    A("v_add_f32_dpp v64, v64, v64 row_ror:8 %s" % DPPF)
    A("v_add_f32_dpp v65, v65, v65 row_ror:8 %s" % DPPF)
    A("v_cvt_pk_bf16_f32 v66, v64, v65")
    A("v_lshlrev_b32 v64, 16, v66")
    A("v_and_b32 v65, 0xffff0000, v66")
    A("v_add_f32 v64, v64, %s" % vXO0)
    A("v_add_f32 v65, v65, %s" % vXO1)
    A("v_cvt_pk_bf16_f32 v66, v64, v65")
    A("s_mov_b32 s56, 0xff")
    A("s_mov_b32 s57, 0xff")
    if final:
        A("s_mov_b64 exec, s[56:57]")
        A("global_store_dword %s, v66, %s" % (vCS, sOUT))
    else:
        A("v_min_u32 v67, -2, v66")
        A("s_mov_b64 exec, s[56:57]")
        istore("global_store_dword %s, v67, %s offset:%d" % (vRPUB, sWS, sigma * 1024))
    A("s_mov_b64 exec, -1")
    A("v_lshlrev_b32 %s, 16, v66" % vXO0)
    A("v_and_b32 %s, 0xffff0000, v66" % vXO1)

def roles(l):
    l1, l2, l3, ld = L("Lr1"), L("Lr2"), L("Lr3"), L("Lrd")
    A("s_cmp_eq_u32 %s, 1" % sW)
    A("s_cbranch_scc1 %s" % l1)
    A("s_cmp_eq_u32 %s, 2" % sW)
    A("s_cbranch_scc1 %s" % l2)
    A("s_cmp_eq_u32 %s, 3" % sW)
    A("s_cbranch_scc1 %s" % l3)
    A("s_branch %s" % ld)
    A.label(l1)
    A("s_cmp_ge_u32 %s, 14" % sR)
    A("s_cbranch_scc1 %s" % ld)
    poll(["global_load_dwordx4 %s, %s, %s offset:%d sc1" % (v(64 + 4 * t, 4), vRPOLL, sWS, l * 4096 + t * 1024 - 4096) for t in range(4)],
         range(64, 80))
    stamp("XB arrived")
    stage_finish(4, False, 2 * l)
    stamp("x1 published")
    if l == 1:
        A("s_cmp_lg_u32 %s, 0" % sG)
        A("s_cbranch_scc1 %s" % ld)
    poll(["global_load_dwordx4 v[64:67], %s, %s offset:%d sc1" % (vXEG, sWS, l * 1024)], range(64, 68))
    stamp("XE arrived")
    stage_finish(1, l == 1, 1)
    stamp("x2 published")
    A("s_branch %s" % ld)
    A.label(l2)
    A("s_cmp_ge_u32 %s, 14" % sR)
    A("s_cbranch_scc1 %s" % ld)
    if l == 0:
        A("s_mul_i32 %s, %s, %d" % (sT0, sG, 224 * 896))
        A("s_lshl_b32 %s, %s, 6" % (sT1, sR))
        A("s_add_u32 %s, %s, %s" % (sT0, sT0, sT1))
        A("s_add_u32 s44, s20, %s" % sT0)
        A("s_addc_u32 s45, s21, 0")
        A("v_lshrrev_b32 v64, 2, %s" % vLANE)
        A("v_mul_u32_u24 v64, 896, v64")
        A("v_and_b32 v65, 3, %s" % vLANE)
        A("v_lshl_add_u32 v64, v65, 4, v64")
        dma("v64", None, None, 14, 14336, L_WD)
        A("s_waitcnt vmcnt(0)")
        for s in range(7):
            for nt in range(2):
                trpair(aRW + 4 * (2 * s + nt), "v129", s * 2048 + nt * 32, 256)
        A("s_waitcnt lgkmcnt(0)")
        stamp("wd ready")
    poll(["global_load_dwordx4 %s, %s, %s offset:%d sc1" % (v(XQ, 4), vRPOLL, sWS, l * 512)], range(XQ, XQ + 4))
    stamp("h arrived")
    A("v_mov_b32 v%d, 0" % T[0])
    A("v_mov_b32 v%d, 0" % T[1])
    adds = []
    for s in range(7):
        for nt in range(2):
            d = ACC + 4 * (2 * s + nt) + (s & 3)
            adds.append("v_add_f32_dpp v%d, v%d, v%d quad_perm:[0,1,2,3] row_mask:0x%x bank_mask:0xf" % (T[nt], d, T[nt], 1 << (s >> 2)))
    for i in range(14):
        A("v_mfma_f32_16x16x32_bf16 %s, %s, %s, 0" % (v(ACC + 4 * i, 4), v(XQ, 4), a(aRW + 4 * i)))
        if i >= 5:
            A(adds[i - 5])
    for i in range(9, 14):
        A(adds[i])
    A("v_permlane16_swap_b32 v%d, v%d" % (T[0], T[1]))
    A("v_add_f32 v%d, v%d, v%d" % (T[0], T[0], T[1]))
    A("v_min_u32 v%d, -2, v%d" % (T[0], T[0]))
    A("s_mov_b64 exec, 0xffffffff")
    A("global_store_dword %s, v%d, %s offset:%d sc1" % (vRPUB, T[0], sWS, l * 1024))
    A("s_mov_b64 exec, -1")
    stamp("XE published")
    A("s_branch %s" % ld)
    A.label(l3)
    A("s_cmp_ge_u32 %s, 28" % sR)
    A("s_cbranch_scc1 %s" % ld)
    if l == 0:
        A("s_mul_i32 %s, %s, 448" % (sT0, sG))
        A("s_lshl_b32 %s, %s, 4" % (sT1, sR))
        A("s_add_u32 %s, %s, %s" % (sT0, sT0, sT1))
        A("s_add_u32 s44, s16, %s" % sT0)
        A("s_addc_u32 s45, s17, 0")
        A("v_mul_u32_u24 v64, 3584, %s" % vLANE)
        dma("v64", None, None, 7, 64 * 3584, L_WG)
        A("s_add_u32 s44, s18, %s" % sT0)
        A("s_addc_u32 s45, s19, 0")
        dma("v64", None, None, 7, 64 * 3584, L_WG + 7168)
        A("s_waitcnt vmcnt(0)")
        for s in range(14):
            trpair(aRW + 4 * s, "v129", s * 512, 64)
        A("s_waitcnt lgkmcnt(0)")
        colsum()
        stamp("wgu ready")
    poll(["global_load_dwordx4 %s, %s, %s offset:%d sc1" % (v(XQ, 4), vRPOLL, sWS, 2 * l * 1024)], range(XQ, XQ + 4))
    stamp("x1 arrived")
    gemv14()
    g_, u_, e_ = T[0], T[1], T[2]
    A("v_mul_f32 v%d, %s, v%d" % (e_, f32(-LOG2E), g_))
    A("v_exp_f32 v%d, v%d" % (e_, e_))
    A("v_mov_b32_dpp v%d, v%d row_shl:8 %s" % (u_, g_, DPPF))
    A("v_add_f32 v%d, 1.0, v%d" % (e_, e_))
    A("v_rcp_f32 v%d, v%d" % (e_, e_))
    A("v_mul_f32 v%d, v%d, v%d" % (u_, u_, g_))
    A("v_mul_f32 v%d, v%d, v%d" % (g_, u_, e_))
    pack_pairs_store(g_, 0x55, vRPUB, l * 512)
    stamp("h published")
    A.label(ld)

for l in range(2):
    attention(l)
    outproj(l)
    roles(l)

stamp("end")
A.label("L_bail")
A("s_endpgm")
for ls, instr, lb in slow_paths:
    A.label(ls)
    A(instr)
    A("s_branch %s" % lb)

A.raw('.section .rodata,"a"')
A.raw(".p2align 6")
A.raw(".amdhsa_kernel %s" % KN)
A.raw("  .amdhsa_next_free_vgpr 336")
A.raw("  .amdhsa_next_free_sgpr 64")
A.raw("  .amdhsa_accum_offset 136")
A.raw("  .amdhsa_group_segment_fixed_size 0")
A.raw("  .amdhsa_kernarg_size 96")
A.raw("  .amdhsa_user_sgpr_count 2")
A.raw("  .amdhsa_user_sgpr_kernarg_segment_ptr 1")
A.raw("  .amdhsa_system_sgpr_workgroup_id_x 1")
A.raw("  .amdhsa_float_denorm_mode_32 3")
A.raw("  .amdhsa_float_denorm_mode_16_64 3")
A.raw(".end_amdhsa_kernel")

out = sys.argv[1] if len(sys.argv) > 1 else "cdna_kernels/%s.s" % NAME
open(out, "w").write(A.text())
print("wrote", out, "lines", len(A.lines), "nops", A.nops_added, "stamps", stamp_idx[0])
```
